```python
import torch

def _softmax(x, axis=-1):
    return torch.softmax(x, dim=axis)
def _gelu(x):
    return torch.nn.functional.gelu(x, approximate="tanh")
def _silu(x):
    return torch.nn.functional.silu(x)
def _sigmoid(x):
    return torch.sigmoid(x)
def _layernorm(x, axis=-1, eps=1e-5):
    m = x.mean(dim=axis, keepdim=True)
    v = x.var(dim=axis, keepdim=True, unbiased=False)
    return (x - m) / torch.sqrt(v + eps)
def _scatter_add(tgt, idx, src, axis=0):
    return tgt.clone().index_add_(axis, idx, src)
def _segment_sum(src, seg, n):
    out = torch.zeros((n,) + src.shape[1:], dtype=src.dtype)
    return out.index_add_(0, seg, src)
def _pad(x, pw):
    flat = tuple(v for pair in reversed(pw) for v in pair)
    return torch.nn.functional.pad(x, flat)

kernel_name = 'standalone__gqa_block_cached__near_ridge'

def setup_inputs():

    _w = (lambda a: (lambda t: t.to(torch.bfloat16) if t.is_floating_point() else t)(torch.as_tensor(a)))
    B, Sq, D = 8, 112, 576
    Hq, Hkv, Sk, Dh = 32, 16, 512, 128
    assert Hq % Hkv == 0, (Hq, Hkv)
    return {
        "x": _w((lambda *s: torch.randn(*s, dtype=torch.bfloat16) * 0.8)(B, Sq, D)),
        "k_cache": _w((lambda *s: torch.randn(*s, dtype=torch.bfloat16) * 0.8)(B, Hkv, Sk, Dh)),
        "v_cache": _w((lambda *s: torch.randn(*s, dtype=torch.bfloat16) * 0.05)(B, Hkv, Sk, Dh)),
        "wq": _w((lambda *s: torch.randn(*s, dtype=torch.bfloat16) * 0.8)(D, Hq * Dh) * (D ** -0.5)),
        "wo": _w((lambda *s: torch.randn(*s, dtype=torch.bfloat16) * 0.05)(Hq * Dh, D) * ((Hq * Dh) ** -0.5)),
    }

def reference(x, k_cache, v_cache, wq, wo):
    B, Sq, D = x.shape
    Hq, Dh = 32, 128
    Hkv = k_cache.shape[1]
    rep = Hq // Hkv
    q = (lambda x, *d: x.permute(*d))((x @ wq).reshape(B, Sq, Hq, Dh), 0, 2, 1, 3)
    k = (lambda x, n, axis: torch.repeat_interleave(x, n, dim=axis))(k_cache, rep, axis=1)
    v = (lambda x, n, axis: torch.repeat_interleave(x, n, dim=axis))(v_cache, rep, axis=1)
    scores = torch.einsum("bhqd,bhkd->bhqk", q, k) * (Dh ** -0.5)
    p = _softmax(scores, axis=-1)
    o = torch.einsum("bhqk,bhkd->bhqd", p, v)
    return (lambda x, *d: x.permute(*d))(o, 0, 2, 1, 3).reshape(B, Sq, Hq * Dh) @ wo
```

```python
import re

class I:
    __slots__ = ("text", "kind", "wr", "rd", "srcC", "ws")
    def __init__(self, text, kind, wr=(), rd=(), srcC=(), ws=1):
        self.text = text; self.kind = kind
        self.wr = frozenset(wr); self.rd = frozenset(rd); self.srcC = frozenset(srcC); self.ws = ws

def R(name, n, cnt=1):
    return [(name, n + i) for i in range(cnt)]

def rs(name, n, cnt=1):
    if cnt == 1: return f"{name}{n}"
    return f"{name}[{n}:{n+cnt-1}]"

class Asm:
    def __init__(self):
        self.ins = []
        self.vm = []
        self.lg = []
    def raw(self, s): self.ins.append(s)
    def label(self, s): self.ins.append(s + ":")
    def comment(self, s): self.ins.append("    ; " + s)
    def e(self, text, kind, wr=(), rd=(), srcC=(), ws=1):
        self.ins.append(I(text, kind, wr, rd, srcC, ws))
    def salu(self, text, wr=(), rd=()): self.e(text, "salu", wr, rd)
    def nop(self, n): self.e(f"s_nop {n}", "nop", ws=n + 1)
    def valu(self, text, wr=(), rd=(), kind="valu"): self.e(text, kind, wr, rd)
    def trans(self, text, wr=(), rd=()): self.e(text, "trans", wr, rd)
    def mfma(self, d, a, b, c, dt="v", at="a", bt="a", czero=False):
        cs = "0" if czero else rs(dt, d, 16)
        self.e(f"v_mfma_f32_32x32x16_bf16 {rs(dt,d,16)}, {rs(at,a,4)}, {rs(bt,b,4)}, {cs}", "mfma",
               wr=R(dt, d, 16), rd=R(at, a, 4) + R(bt, b, 4), srcC=() if czero else R(dt, d, 16))
    def vmem(self, text, tag, wr=(), rd=(), kind="vmem"):
        self.e(text, kind, wr, rd); self.vm.append(tag)
    def wait_vm(self, tag):
        idx = max(i for i, t in enumerate(self.vm) if t == tag)
        n = len(self.vm) - 1 - idx
        n = min(n, 63)
        self.e(f"s_waitcnt vmcnt({n})", "wait")
        return n
    def wait_vm_n(self, n): self.e(f"s_waitcnt vmcnt({n})", "wait")
    def lds(self, text, tag, wr=(), rd=()):
        self.e(text, "lds", wr, rd); self.lg.append(tag)
    def wait_lg(self, tag):
        idx = max(i for i, t in enumerate(self.lg) if t == tag)
        n = len(self.lg) - 1 - idx
        assert n <= 15, n
        self.e(f"s_waitcnt lgkmcnt({n})", "wait")
    def wait_lg0(self):
        self.e("s_waitcnt lgkmcnt(0)", "wait")
    def barrier(self): self.e("s_barrier", "barrier")

    def check(self):
        seq = [i for i in self.ins if isinstance(i, I)]
        errs = []
        n = len(seq)
        for i, a in enumerate(seq):
            if a.kind not in ("valu", "trans", "mfma", "salu"): continue
            dist = 0
            for j in range(i + 1, min(n, i + 24)):
                b = seq[j]
                need = 0
                if a.kind in ("valu", "trans"):
                    if b.kind == "mfma" and (a.wr & (b.rd | b.srcC)): need = max(need, 2)
                    if a.kind == "trans" and b.kind in ("valu",) and (a.wr & b.rd): need = max(need, 1)
                    if b.kind == "valu" and "permlane" in b.text and (a.wr & (b.rd | b.wr)): need = max(need, 2)
                    if b.kind == "valu" and "readfirstlane" in b.text and (a.wr & b.rd): need = max(need, 1)
                    sw = {r for r in a.wr if r[0] == "s"}
                    if sw:
                        if b.kind in ("vmem",) and (sw & b.rd): need = max(need, 5)
                        if b.kind in ("valu", "trans") and (sw & b.rd): need = max(need, 2)
                        if b.kind == "salu" and (sw & b.rd): need = max(need, 1)
                if a.kind == "mfma":
                    if b.kind == "mfma":
                        if a.wr & b.rd: need = max(need, 12)
                        if (a.wr & b.srcC) and (a.wr != b.srcC): need = max(need, 10)
                    elif b.kind in ("valu", "trans", "vmem", "lds"):
                        if a.wr & (b.rd | b.wr): need = max(need, 12)
                        if b.kind in ("valu", "trans") and (a.srcC & b.wr): need = max(need, 7)
                if a.kind == "salu" and ("s", "m0") in a.wr and b.kind == "vmem" and "lds" in b.text: need = max(need, 1)
                if need > dist:
                    errs.append(f"hazard need {need} have {dist}: [{a.text}] -> [{b.text}]")
                dist += b.ws
        for i, a in enumerate(seq):
            if a.kind == "vmem" and "store_dwordx4" in a.text:
                dist = 0
                for j in range(i + 1, min(n, i + 4)):
                    b = seq[j]
                    if b.kind in ("valu", "trans") and (b.wr & a.rd) and dist < 2:
                        errs.append(f"store WAR: [{a.text}] -> [{b.text}]")
                    dist += b.ws
        return errs

    def text(self):
        out = []
        for i in self.ins:
            out.append(i if isinstance(i, str) else "    " + i.text)
        return "\n".join(out) + "\n"
```

```python
import sys, struct
from asmlib import *

def f2u(f): return struct.unpack("<I", struct.pack("<f", f))[0]

HEADER = """; Kernarg layout for this problem (64 bytes, ptrs only, base s[0:1]):
; @launch kernel=attn_fused_kernel grid=(256,1,1) block=(256,1,1) lds=163840
; @launch kernel=oproj_kernel grid=(256,1,1) block=(256,1,1) lds=163840
.amdgcn_target "amdgcn-amd-amdhsa--gfx950"
.text
"""

def kd(name, vgpr=512, accum=256, sgpr=96):
    return f"""
.section .rodata,"a"
.p2align 6
.amdhsa_kernel {name}
  .amdhsa_next_free_vgpr {vgpr}
  .amdhsa_next_free_sgpr {sgpr}
  .amdhsa_accum_offset {accum}
  .amdhsa_group_segment_fixed_size 0
  .amdhsa_kernarg_size 64
  .amdhsa_user_sgpr_count 2
  .amdhsa_user_sgpr_kernarg_segment_ptr 1
  .amdhsa_system_sgpr_workgroup_id_x 1
.end_amdhsa_kernel
.text
"""

def srd(A, d, base, size):
    A.salu(f"s_mov_b32 s{d}, s{base}", wr=R('s', d), rd=R('s', base))
    A.salu(f"s_and_b32 s{d+1}, s{base+1}, 0xffff", wr=R('s', d+1), rd=R('s', base+1))
    A.salu(f"s_mov_b32 s{d+2}, {size}", wr=R('s', d+2))
    A.salu(f"s_mov_b32 s{d+3}, 0x00020000", wr=R('s', d+3))

def V(n, c=1): return R('v', n, c)
def Ar(n, c=1): return R('a', n, c)
def S(n, c=1): return R('s', n, c)

C_SCALE = (128.0 ** -0.5) * 1.4426950408889634
THRESH = 8.0 / C_SCALE

def gen_k1():
    A = Asm()
    A.raw(".globl attn_fused_kernel\n.p2align 8\n.type attn_fused_kernel,@function\nattn_fused_kernel:")
    A.salu("s_cmp_ge_u32 s2, 256", rd=S(2))
    A.e("s_cbranch_scc1 K1_END", "branch")
    A.e("s_load_dwordx4 s[4:7], s[0:1], 0", "smem")
    A.e("s_load_dwordx4 s[8:11], s[0:1], 16", "smem")
    A.e("s_load_dwordx2 s[12:13], s[0:1], 32", "smem")
    A.e("s_load_dwordx2 s[14:15], s[0:1], 56", "smem")
    A.salu("s_and_b32 s50, s2, 7", wr=S(50))
    A.salu("s_lshr_b32 s51, s2, 3", wr=S(51))
    A.salu("s_lshr_b32 s40, s51, 2", wr=S(40))
    A.salu("s_and_b32 s51, s51, 3", wr=S(51))
    A.salu("s_lshl_b32 s41, s50, 2", wr=S(41))
    A.salu("s_add_u32 s41, s41, s51", wr=S(41))
    A.salu("s_lshr_b32 s42, s41, 1", wr=S(42))
    A.valu("v_lshrrev_b32 v2, 6, v0", wr=V(2), rd=V(0))
    A.valu("v_and_b32 v1, 63, v0", wr=V(1), rd=V(0))
    A.valu("v_readfirstlane_b32 s43, v2", wr=S(43), rd=V(2))
    A.nop(1)
    A.salu("s_lshl_b32 s44, s43, 10", wr=S(44), rd=S(43))
    A.salu("s_lshl_b32 s45, s40, 4", wr=S(45))
    A.salu("s_add_u32 s45, s45, s42", wr=S(45))
    A.salu("s_lshl_b32 s45, s45, 17", wr=S(45))
    A.salu(f"s_mov_b32 s47, {f2u(C_SCALE):#x}", wr=S(47))
    A.salu(f"s_mov_b32 s48, {f2u(THRESH):#x}", wr=S(48))
    A.salu(f"s_mov_b32 s52, {f2u(-C_SCALE):#x}", wr=S(52))
    A.salu("s_mov_b32 s49, 0", wr=S(49))
    A.salu("s_mul_i32 s53, s40, 112", wr=S(53))
    A.salu("s_lshl_b32 s54, s43, 5", wr=S(54), rd=S(43))
    A.salu("s_add_u32 s53, s53, s54", wr=S(53))
    A.valu("v_and_b32 v3, 31, v1", wr=V(3), rd=V(1))
    A.valu("v_lshrrev_b32 v4, 5, v1", wr=V(4), rd=V(1))
    A.valu("v_add_u32 v5, s53, v3", wr=V(5), rd=V(3) + S(53))
    A.valu("v_mul_u32_u24 v52, 1152, v5", wr=V(52), rd=V(5))
    A.valu("v_lshl_add_u32 v52, v4, 6, v52", wr=V(52), rd=V(4) + V(52))
    A.valu("v_lshlrev_b32 v56, 13, v5", wr=V(56), rd=V(5))
    A.salu("s_lshl_b32 s55, s41, 8", wr=S(55))
    A.valu("v_lshl_add_u32 v56, v4, 4, v56", wr=V(56), rd=V(4) + V(56))
    A.valu("v_add_u32 v56, s55, v56", wr=V(56), rd=V(56) + S(55))
    A.valu("v_lshrrev_b32 v6, 4, v1", wr=V(6), rd=V(1))
    A.valu("v_and_b32 v7, 15, v1", wr=V(7), rd=V(1))
    A.salu("s_lshl_b32 s54, s43, 2", wr=S(54), rd=S(43))
    A.valu("v_add_u32 v8, s54, v6", wr=V(8), rd=V(6) + S(54))
    A.valu("v_lshlrev_b32 v9, 2, v6", wr=V(9), rd=V(6))
    A.valu("v_xor_b32 v9, v7, v9", wr=V(9), rd=V(7) + V(9))
    A.valu("v_lshlrev_b32 v9, 4, v9", wr=V(9), rd=V(9))
    A.valu("v_lshl_add_u32 v53, v8, 13, v9", wr=V(53), rd=V(8) + V(9))
    A.valu("v_add_u32 v53, s55, v53", wr=V(53), rd=V(53) + S(55))
    A.valu("v_lshl_add_u32 v55, v8, 8, v9", wr=V(55), rd=V(8) + V(9))
    A.valu("v_xor_b32 v10, v7, v8", wr=V(10), rd=V(7) + V(8))
    A.valu("v_lshlrev_b32 v10, 4, v10", wr=V(10), rd=V(10))
    A.valu("v_lshl_add_u32 v54, v8, 8, v10", wr=V(54), rd=V(8) + V(10))
    A.valu("v_bfe_u32 v11, v1, 4, 1", wr=V(11), rd=V(1))
    A.valu("v_bfe_u32 v12, v1, 2, 2", wr=V(12), rd=V(1))
    A.valu("v_and_b32 v13, 1, v1", wr=V(13), rd=V(1))
    A.valu("v_bfe_u32 v14, v1, 1, 1", wr=V(14), rd=V(1))
    A.valu("v_lshl_add_u32 v15, v4, 5, v12", wr=V(15), rd=V(4) + V(12))
    A.valu("v_lshlrev_b32 v15, 8, v15", wr=V(15), rd=V(15))
    A.valu("v_lshl_add_u32 v15, v11, 5, v15", wr=V(15), rd=V(11) + V(15))
    A.valu("v_lshl_add_u32 v15, v13, 4, v15", wr=V(15), rd=V(13) + V(15))
    A.valu("v_lshl_add_u32 v15, v14, 3, v15", wr=V(15), rd=V(14) + V(15))
    for dt in range(4):
        A.valu(f"v_xor_b32 v2, {dt}, v12", wr=V(2), rd=V(12))
        A.valu(f"v_lshl_add_u32 v{40+dt}, v2, 6, v15", wr=V(40+dt), rd=V(2) + V(15))
        A.valu(f"v_add_u32 v{44+dt}, 0x10000, v{40+dt}", wr=V(44+dt), rd=V(40+dt))
        A.valu(f"v_add_u32 v{48+dt}, 0x20000, v{40+dt}", wr=V(48+dt), rd=V(40+dt))
    A.valu("v_bfe_u32 v2, v1, 2, 1", wr=V(2), rd=V(1))
    A.valu("v_bfe_u32 v11, v1, 3, 1", wr=V(11), rd=V(1))
    A.valu("v_bfe_u32 v12, v1, 4, 1", wr=V(12), rd=V(1))
    A.valu("v_and_b32 v13, 3, v1", wr=V(13), rd=V(1))
    A.valu("v_lshl_add_u32 v13, v11, 2, v13", wr=V(13), rd=V(11) + V(13))
    A.valu("v_lshl_add_u32 v13, v12, 3, v13", wr=V(13), rd=V(12) + V(13))
    A.valu("v_lshl_add_u32 v14, v2, 5, v13", wr=V(14), rd=V(2) + V(13))
    A.valu("v_lshlrev_b32 v14, 8, v14", wr=V(14), rd=V(14))
    for s in range(8):
        A.valu(f"v_add_u32 v2, {2*s}, v4", wr=V(2), rd=V(4))
        A.valu("v_xor_b32 v2, v2, v13", wr=V(2), rd=V(2) + V(13))
        A.valu(f"v_lshl_add_u32 v{16+s}, v2, 4, v14", wr=V(16+s), rd=V(2) + V(14))
        A.valu(f"v_add_u32 v{24+s}, 0x10000, v{16+s}", wr=V(24+s), rd=V(16+s))
        A.valu(f"v_add_u32 v{32+s}, 0x20000, v{16+s}", wr=V(32+s), rd=V(16+s))
    A.e("s_waitcnt lgkmcnt(0)", "wait")
    srd(A, 16, 4, 8*112*576*2)
    srd(A, 20, 6, 16777216)
    srd(A, 24, 8, 16777216)
    srd(A, 28, 10, 576*4096*2)
    srd(A, 32, 12, 576*4096*2)
    srd(A, 36, 14, 896*4096*2)

    NR = 10
    chunks = [('W', c) for c in range(9)] + [('K', 0), ('K', 1)]
    for j in range(1, 7): chunks += [('V', j-1), ('K', j+1)]
    chunks += [('V', 6), ('V', 7)]
    NC = len(chunks)
    cidx = {c: i for i, c in enumerate(chunks)}

    def issue_dma(ci):
        ty, j = chunks[ci]
        slot = ci % NR
        for n in range(4):
            A.salu(f"s_add_u32 m0, s44, {slot*16384 + n*4096}", wr=[('s', 'm0')], rd=S(44))
            if ty == 'W':
                A.salu(f"s_mov_b32 s46, {(64*j + 16*n)*8192}", wr=S(46))
                A.vmem("buffer_load_dwordx4 v53, s[28:31], s46 offen lds", ('c', ci), rd=V(53) + S(46) + S(28, 4))
            else:
                A.salu(f"s_add_u32 s46, s45, {j*16384 + n*4096}", wr=S(46), rd=S(45))
                if ty == 'K':
                    A.vmem("buffer_load_dwordx4 v54, s[20:23], s46 offen lds", ('c', ci), rd=V(54) + S(46) + S(20, 4))
                else:
                    A.vmem("buffer_load_dwordx4 v55, s[24:27], s46 offen lds", ('c', ci), rd=V(55) + S(46) + S(24, 4))

    def xload(G):
        for sp in range(4):
            a = G*16 + sp*4
            A.vmem(f"buffer_load_dwordx4 a[{a}:{a+3}], v52, s[16:19], 0 offen offset:{G*128 + sp*16}", ('x', G), wr=Ar(a, 4), rd=V(52) + S(16, 4))

    for G in range(9):
        xload(G); issue_dma(G)
    issue_dma(9)

    NF = 12; FB = 208; PD = 6
    QF = 64; SB = [96, 128]; PB = [160, 176]; OB = 144
    items = []
    def vw_reads(ci, sp, dt, frag):
        slot = ci % NR; st = slot // 4; rel = (slot % 4) * 16384
        av = 40 + 4*st + dt
        out = []
        for t in range(2):
            out.append((f"ds_read_b64_tr_b16 a[{frag+2*t}:{frag+2*t+1}], v{av} offset:{rel + (8*sp + 4*t)*256}", Ar(frag+2*t, 2), V(av)))
        return out
    def k_reads(ci, T, s, frag):
        slot = ci % NR; st = slot // 4; rel = (slot % 4) * 16384
        av = 16 + 8*st + s
        return [(f"ds_read_b128 a[{frag}:{frag+3}], v{av} offset:{rel + T*4096}", Ar(frag, 4), V(av))]
    def add_item(ci, rd_fn, mf):
        frag = FB + 4*(len(items) % NF)
        items.append(dict(ci=ci, reads=rd_fn(frag), frag=frag, mf=mf))
    for c in range(9):
        ci = cidx[('W', c)]
        order = [(sp, dt) for sp in range(4) for dt in range(4)] if c < 8 else [(sp, dt) for dt in range(4) for sp in range(4)]
        for sp, dt in order:
            add_item(ci, (lambda f, ci=ci, sp=sp, dt=dt: vw_reads(ci, sp, dt, f)),
                     (lambda f, c=c, sp=sp, dt=dt: A.mfma(96 + 16*dt, f, c*16 + sp*4, None, 'v', 'a', 'a', czero=(c == 0 and sp == 0))))
    def add_qk(j):
        ci = cidx[('K', j)]
        for T in range(2):
            for s in range(8):
                add_item(ci, (lambda f, ci=ci, T=T, s=s: k_reads(ci, T, s, f)),
                         (lambda f, j=j, T=T, s=s: A.mfma(SB[j & 1] + 16*T, f, QF + 4*s, None, 'v', 'a', 'v', czero=(s == 0))))
    def add_pv(j):
        ci = cidx[('V', j)]
        for sp in range(4):
            for dt in range(4):
                add_item(ci, (lambda f, ci=ci, sp=sp, dt=dt: vw_reads(ci, sp, dt, f)),
                         (lambda f, j=j, sp=sp, dt=dt: A.mfma(OB + 16*dt, f, PB[j & 1] + 4*sp, None, 'a', 'a', 'v', czero=(j == 0 and sp == 0))))
    start = {}
    start[('QK', 0)] = len(items); add_qk(0)
    start[('QK', 1)] = len(items); add_qk(1)
    for j in range(1, 8):
        start[('PV', j-1)] = len(items); add_pv(j-1)
        if j + 1 <= 7:
            start[('QK', j+1)] = len(items); add_qk(j+1)
    start[('PV', 7)] = len(items); add_pv(7)
    NI = len(items)

    fill = [[] for _ in range(NI)]
    pre = [[] for _ in range(NI)]
    def spread(ops, i0, i1):
        n = i1 - i0
        for k, op in enumerate(ops):
            fill[i0 + min(n - 1, (k * n) // len(ops))].append(op)

    def cvtq(dt):
        ops = []
        for half in range(2):
            for p in range(4):
                src = 96 + 16*dt + 8*half + 2*p
                dst = QF + 4*(2*dt + half) + p
                ops.append(lambda src=src, dst=dst: A.valu(f"v_cvt_pk_bf16_f32 v{dst}, v{src}, v{src+1}", wr=V(dst), rd=V(src, 2)))
        return ops
    p1_last = 8*16
    for dt in range(3):
        spread(cvtq(dt), p1_last + 4*(dt+1) + 2, p1_last + 4*(dt+1) + 4)
    spread(cvtq(3), start[('QK', 0)] + 2, start[('QK', 0)] + 5)

    VM, VNEG, VF, VL = 57, 58, 59, 60
    rare = []
    def sm_ops(j):
        sb = SB[j & 1]; pb = PB[j & 1]
        ops = []
        def mx3(dst, a, b, c): ops.append(lambda: A.valu(f"v_max3_f32 v{dst}, v{a}, v{b}, v{c}", wr=V(dst), rd=V(a) + V(b) + V(c)))
        for T, acc in ((0, 2), (1, 3)):
            b = sb + 16*T
            mx3(acc, b, b+1, b+2)
            for e in range(3, 15, 2): mx3(acc, acc, b+e, b+e+1)
            ops.append(lambda acc=acc, b=b: A.valu(f"v_max_f32 v{acc}, v{acc}, v{b+15}", wr=V(acc), rd=V(acc) + V(b+15)))
        ops.append(lambda: A.valu("v_max_f32 v2, v2, v3", wr=V(2), rd=V(2) + V(3)))
        def xh():
            A.valu("v_mov_b32 v3, v2", wr=V(3), rd=V(2))
            A.nop(1)
            A.valu("v_permlane32_swap_b32 v3, v2", wr=V(2) + V(3), rd=V(2) + V(3))
            A.valu("v_max_f32 v2, v2, v3", wr=V(2), rd=V(2) + V(3))
            if j == 0:
                A.valu(f"v_mov_b32 v{VM}, v2", wr=V(VM), rd=V(2))
                A.valu(f"v_mul_f32 v{VNEG}, s52, v2", wr=V(VNEG), rd=V(2) + S(52))
                for k in range(4): A.valu(f"v_mov_b32 v{VL+k}, 0", wr=V(VL+k))
            else:
                A.valu(f"v_sub_f32 v3, v2, v{VM}", wr=V(3), rd=V(2) + V(VM))
                A.valu("v_cmp_lt_f32 vcc, s48, v3", wr=[('s', 'vcc')], rd=V(3) + S(48))
                A.e(f"s_cbranch_vccnz K1_UPD{j}", "branch")
                A.label(f"K1_UPDR{j}")
                rare.append(('upd', j))
        ops.append(xh)
        for g in range(8):
            b = sb + 4*g
            for k in range(4):
                ops.append(lambda b=b, k=k: A.valu(f"v_fma_f32 v{b+k}, v{b+k}, s47, v{VNEG}", wr=V(b+k), rd=V(b+k) + V(VNEG) + S(47)))
            for k in range(4):
                ops.append(lambda b=b, k=k: A.trans(f"v_exp_f32 v{b+k}, v{b+k}", wr=V(b+k), rd=V(b+k)))
            for k in range(4):
                ops.append(lambda b=b, k=k: A.valu(f"v_add_f32 v{VL+k}, v{VL+k}, v{b+k}", wr=V(VL+k), rd=V(VL+k) + V(b+k)))
            for k in range(2):
                ops.append(lambda b=b, k=k, g=g: A.valu(f"v_cvt_pk_bf16_f32 v{pb+2*g+k}, v{b+2*k}, v{b+2*k+1}", wr=V(pb+2*g+k), rd=V(b+2*k, 2)))
        return ops
    spread(sm_ops(0), start[('QK', 1)] + 1, start[('QK', 1)] + 16)
    for j in range(1, 8):
        i0 = start[('PV', j-1)] + 1
        i1 = start[('PV', j)]
        spread(sm_ops(j), i0, i1)
    for j in range(1, 8):
        def chk(j=j):
            A.salu("s_cmp_lg_u32 s49, 0", rd=S(49))
            A.e(f"s_cbranch_scc1 K1_RES{j}", "branch")
            A.label(f"K1_RESR{j}")
            rare.append(('res', j))
        pre[start[('PV', j)]].append(chk)

    def emit_reads(i):
        for (t, w, r) in items[i]['reads']:
            A.lds(t, ('f', i), wr=w, rd=r)
    cur = -1
    for i in range(NI):
        it = items[i]
        if it['ci'] != cur:
            cur = it['ci']
            if cur + 1 < NC: A.wait_vm(('c', cur + 1))
            else: A.wait_vm(('c', cur))
            A.barrier()
            if cur >= 1 and cur - 1 + NR < NC: issue_dma(cur - 1 + NR)
            if i == 0:
                for k in range(PD): emit_reads(k)
        for op in pre[i]: op()
        if i + PD < NI: emit_reads(i + PD)
        A.wait_lg(('f', i))
        it['mf'](it['frag'])
        for op in fill[i]: op()

    A.salu("s_mul_i32 s46, s2, 18432", wr=S(46))
    A.valu("v_lshlrev_b32 v4, 4, v0", wr=V(4), rd=V(0))
    for k in range(5):
        A.vmem(f"buffer_load_dwordx4 v[200:203], v4, s[32:35], s46 offen", ('pf', k), wr=V(200, 4), rd=V(4) + S(46) + S(32, 4))
        if k < 4: A.salu("s_add_u32 s46, s46, 4096", wr=S(46), rd=S(46))
    A.valu(f"v_add_f32 v{VL}, v{VL}, v{VL+1}", wr=V(VL), rd=V(VL, 2))
    A.valu(f"v_add_f32 v{VL+2}, v{VL+2}, v{VL+3}", wr=V(VL+2), rd=V(VL+2, 2))
    A.valu(f"v_add_f32 v2, v{VL}, v{VL+2}", wr=V(2), rd=V(VL) + V(VL+2))
    A.valu("v_mov_b32 v3, v2", wr=V(3), rd=V(2))
    A.nop(1)
    A.valu("v_permlane32_swap_b32 v3, v2", wr=V(2) + V(3), rd=V(2) + V(3))
    A.valu("v_add_f32 v2, v2, v3", wr=V(2), rd=V(2) + V(3))
    A.trans("v_rcp_f32 v2, v2", wr=V(2), rd=V(2))
    A.valu("v_and_b32 v3, 31, v1", wr=V(3), rd=V(1))
    A.salu("s_lshl_b32 s54, s43, 5", wr=S(54), rd=S(43))
    A.valu("v_add_u32 v3, s54, v3", wr=V(3), rd=V(3) + S(54))
    A.valu("v_cmp_gt_u32 vcc, 112, v3", wr=[('s', 'vcc')], rd=V(3))
    A.nop(7)
    A.salu("s_and_saveexec_b64 s[56:57], vcc", wr=S(56, 2), rd=[('s', 'vcc')])
    for dt in range(4):
        for half in range(2):
            tb = 208 + 8*((2*dt + half) % 4)
            for i in range(8):
                A.valu(f"v_accvgpr_read_b32 v{tb+i}, a{OB + 16*dt + 8*half + i}", wr=V(tb+i), rd=Ar(OB + 16*dt + 8*half + i))
            for i in range(8):
                A.valu(f"v_mul_f32 v{tb+i}, v{tb+i}, v2", wr=V(tb+i), rd=V(tb+i) + V(2))
            ob = 240 + 4*((2*dt + half) % 4)
            for p in range(4):
                A.valu(f"v_cvt_pk_bf16_f32 v{ob+p}, v{tb+2*p}, v{tb+2*p+1}", wr=V(ob+p), rd=V(tb+2*p, 2))
            A.vmem(f"buffer_store_dwordx4 v[{ob}:{ob+3}], v56, s[36:39], 0 offen offset:{dt*64 + half*32}", ('st', dt, half), rd=V(ob, 4) + V(56) + S(36, 4))
    A.salu("s_mov_b64 exec, s[56:57]")
    A.e("s_endpgm", "end")
    for kind, j in rare:
        if kind == 'upd':
            A.label(f"K1_UPD{j}")
            A.raw(f"""    s_nop 7
    v_max_f32 v3, v{VM}, v2
    v_sub_f32 v{VF}, v{VM}, v3
    v_mul_f32 v{VF}, s47, v{VF}
    v_exp_f32 v{VF}, v{VF}
    v_mov_b32 v{VM}, v3
    v_mul_f32 v{VNEG}, s52, v3
    s_nop 1
    v_mul_f32 v{VL}, v{VL}, v{VF}
    v_mul_f32 v{VL+1}, v{VL+1}, v{VF}
    v_mul_f32 v{VL+2}, v{VL+2}, v{VF}
    v_mul_f32 v{VL+3}, v{VL+3}, v{VF}
    s_mov_b32 s49, 1
    s_branch K1_UPDR{j}""")
        else:
            A.label(f"K1_RES{j}")
            A.raw("    s_nop 15\n    s_nop 15")
            for r in range(64):
                A.raw(f"    v_accvgpr_read_b32 v3, a{OB+r}\n    s_nop 0\n    v_mul_f32 v3, v3, v{VF}\n    s_nop 0\n    v_accvgpr_write_b32 a{OB+r}, v3")
            A.raw(f"    s_nop 7\n    s_mov_b32 s49, 0\n    s_branch K1_RESR{j}")
    A.label("K1_END")
    A.raw("    s_endpgm")
    return A

def gen_k2():
    A = Asm()
    A.raw(".globl oproj_kernel\n.p2align 8\n.type oproj_kernel,@function\noproj_kernel:")
    A.salu("s_cmp_ge_u32 s2, 256", rd=S(2))
    A.e("s_cbranch_scc1 K2_END", "branch")
    A.e("s_load_dwordx4 s[4:7], s[0:1], 32", "smem")
    A.e("s_load_dwordx2 s[8:9], s[0:1], 56", "smem")
    A.salu("s_and_b32 s40, s2, 7", wr=S(40))
    A.salu("s_lshr_b32 s41, s2, 3", wr=S(41))
    A.salu("s_lshl_b32 s40, s40, 5", wr=S(40))
    A.salu("s_add_u32 s40, s40, s41", wr=S(40))
    A.salu("s_lshr_b32 s41, s40, 6", wr=S(41))
    A.salu("s_and_b32 s42, s40, 63", wr=S(42))
    A.salu("s_cmp_eq_u32 s42, 63")
    A.e("s_cbranch_scc1 K2_END", "branch")
    A.salu("s_mul_i32 s43, s42, 37", wr=S(43))
    A.salu("s_lshr_b32 s43, s43, 8", wr=S(43))
    A.salu("s_mul_i32 s44, s43, 7", wr=S(44))
    A.salu("s_sub_u32 s44, s42, s44", wr=S(44))
    A.salu("s_mul_i32 s45, s41, 7", wr=S(45))
    A.salu("s_add_u32 s44, s44, s45", wr=S(44))
    A.valu("v_lshrrev_b32 v2, 6, v0", wr=V(2), rd=V(0))
    A.valu("v_and_b32 v1, 63, v0", wr=V(1), rd=V(0))
    A.valu("v_readfirstlane_b32 s46, v2", wr=S(46), rd=V(2))
    A.nop(1)
    A.salu("s_lshl_b32 s47, s46, 15", wr=S(47), rd=S(46))
    A.valu("v_and_b32 v3, 31, v1", wr=V(3), rd=V(1))
    A.valu("v_lshrrev_b32 v4, 5, v1", wr=V(4), rd=V(1))
    A.salu("s_lshl_b32 s48, s44, 5", wr=S(48))
    A.valu("v_add_u32 v5, s48, v3", wr=V(5), rd=V(3) + S(48))
    A.valu("v_lshlrev_b32 v20, 13, v5", wr=V(20), rd=V(5))
    A.valu("v_lshl_add_u32 v20, v4, 6, v20", wr=V(20), rd=V(4) + V(20))
    A.salu("s_lshl_b32 s49, s46, 11", wr=S(49), rd=S(46))
    A.valu("v_add_u32 v20, s49, v20", wr=V(20), rd=V(20) + S(49))
    A.valu("v_mul_u32_u24 v21, 1152, v5", wr=V(21), rd=V(5))
    A.valu("v_lshl_add_u32 v21, v4, 4, v21", wr=V(21), rd=V(4) + V(21))
    A.salu("s_lshl_b32 s50, s43, 7", wr=S(50))
    A.salu("s_lshl_b32 s51, s46, 5", wr=S(51), rd=S(46))
    A.salu("s_add_u32 s51, s51, s50", wr=S(51))
    A.valu("v_add_u32 v21, s51, v21", wr=V(21), rd=V(21) + S(51))
    A.valu("v_lshrrev_b32 v6, 3, v1", wr=V(6), rd=V(1))
    A.valu("v_and_b32 v7, 7, v1", wr=V(7), rd=V(1))
    A.valu("v_bfe_u32 v8, v1, 4, 1", wr=V(8), rd=V(1))
    A.valu("v_lshlrev_b32 v8, 2, v8", wr=V(8), rd=V(8))
    A.valu("v_xor_b32 v7, v7, v8", wr=V(7), rd=V(7) + V(8))
    A.valu("v_mul_u32_u24 v22, 1152, v6", wr=V(22), rd=V(6))
    A.valu("v_lshl_add_u32 v22, v7, 4, v22", wr=V(22), rd=V(7) + V(22))
    A.valu("v_add_u32 v22, s50, v22", wr=V(22), rd=V(22) + S(50))
    A.salu("s_mul_i32 s52, s46, 1179648", wr=S(52), rd=S(46))
    A.valu("v_bfe_u32 v11, v1, 4, 1", wr=V(11), rd=V(1))
    A.valu("v_bfe_u32 v12, v1, 2, 2", wr=V(12), rd=V(1))
    A.valu("v_and_b32 v13, 1, v1", wr=V(13), rd=V(1))
    A.valu("v_bfe_u32 v14, v1, 1, 1", wr=V(14), rd=V(1))
    A.valu("v_lshl_add_u32 v15, v4, 5, v12", wr=V(15), rd=V(4) + V(12))
    A.valu("v_lshlrev_b32 v15, 7, v15", wr=V(15), rd=V(15))
    A.valu("v_lshl_add_u32 v15, v11, 5, v15", wr=V(15), rd=V(11) + V(15))
    A.valu("v_lshl_add_u32 v15, v13, 4, v15", wr=V(15), rd=V(13) + V(15))
    A.valu("v_lshl_add_u32 v15, v14, 3, v15", wr=V(15), rd=V(14) + V(15))
    A.valu("v_add_u32 v15, s47, v15", wr=V(15), rd=V(15) + S(47))
    A.valu("v_lshrrev_b32 v16, 1, v12", wr=V(16), rd=V(12))
    for ct in range(2):
        A.valu(f"v_xor_b32 v2, {ct}, v16", wr=V(2), rd=V(16))
        A.valu(f"v_lshl_add_u32 v{24+ct}, v2, 6, v15", wr=V(24+ct), rd=V(2) + V(15))
    A.e("s_waitcnt lgkmcnt(0)", "wait")
    srd(A, 16, 8, 896*4096*2)
    srd(A, 20, 4, 4096*576*2)
    srd(A, 24, 6, 896*576*2)
    NS = 4
    def issue(G):
        for sp in range(4):
            a = G*16 + sp*4
            A.vmem(f"buffer_load_dwordx4 a[{a}:{a+3}], v20, s[16:19], 0 offen offset:{G*128 + sp*16}", ('o', G), wr=Ar(a, 4), rd=V(20) + S(16, 4))
        for n in range(8):
            A.salu(f"s_add_u32 m0, s47, {(G % NS)*8192 + n*1024}", wr=[('s', 'm0')], rd=S(47))
            A.salu(f"s_add_u32 s53, s52, {(64*G + 8*n)*1152}", wr=S(53), rd=S(52))
            A.vmem("buffer_load_dwordx4 v22, s[20:23], s53 offen lds", ('c', G), rd=V(22) + S(53) + S(20, 4))
    for G in range(NS): issue(G)
    NF = 12; FB = 64; PD = 6
    items = []
    for G in range(16):
        for sp in range(4):
            for ct in range(2):
                items.append((G, sp, ct))
    NI = len(items)
    def reads(i):
        G, sp, ct = items[i]
        f = FB + 4*(i % NF)
        for t in range(2):
            A.lds(f"ds_read_b64_tr_b16 v[{f+2*t}:{f+2*t+1}], v{24+ct} offset:{(G % NS)*8192 + (8*sp + 4*t)*128}", ('f', i), wr=V(f+2*t, 2), rd=V(24+ct))
    curG = -1
    for i in range(NI):
        G, sp, ct = items[i]
        if G != curG:
            curG = G
            A.wait_vm(('c', min(G+1, 15)))
            if G >= 1 and G - 1 + NS < 16: issue(G - 1 + NS)
            if i == 0:
                for k in range(PD): reads(k)
        if i + PD < NI: reads(i + PD)
        A.wait_lg(('f', i))
        A.mfma(32 + 16*ct, FB + 4*(i % NF), G*16 + sp*4, None, 'v', 'v', 'a', czero=(G == 0 and sp == 0))
    A.nop(15)
    A.valu("v_lshlrev_b32 v2, 4, v1", wr=V(2), rd=V(1))
    A.salu("s_lshl_b32 s54, s46, 13", wr=S(54), rd=S(46))
    A.salu("s_add_u32 s54, s54, 0x20000", wr=S(54))
    A.valu("v_add_u32 v3, s54, v2", wr=V(3), rd=V(2) + S(54))
    for g in range(8):
        A.lds(f"ds_write_b128 v3, v[{32+4*g}:{35+4*g}] offset:{g*1024}", ('w', g), rd=V(3) + V(32+4*g, 4))
    A.wait_lg0()
    A.barrier()
    A.salu("s_lshl_b32 s54, s46, 11", wr=S(54), rd=S(46))
    A.salu("s_add_u32 s54, s54, 0x20000", wr=S(54))
    A.valu("v_add_u32 v3, s54, v2", wr=V(3), rd=V(2) + S(54))
    for ww in range(4):
        for g in range(2):
            A.lds(f"ds_read_b128 v[{128+8*ww+4*g}:{131+8*ww+4*g}], v3 offset:{ww*8192 + g*1024}", ('r',), wr=V(128+8*ww+4*g, 4), rd=V(3))
    A.wait_lg0()
    for i in range(8):
        A.valu(f"v_add_f32 v{128+i}, v{128+i}, v{136+i}", wr=V(128+i), rd=V(128+i) + V(136+i))
        A.valu(f"v_add_f32 v{144+i}, v{144+i}, v{152+i}", wr=V(144+i), rd=V(144+i) + V(152+i))
    for i in range(8):
        A.valu(f"v_add_f32 v{128+i}, v{128+i}, v{144+i}", wr=V(128+i), rd=V(128+i) + V(144+i))
    for p in range(4):
        A.valu(f"v_cvt_pk_bf16_f32 v{160+p}, v{128+2*p}, v{129+2*p}", wr=V(160+p), rd=V(128+2*p, 2))
    A.vmem("buffer_store_dwordx4 v[160:163], v21, s[24:27], 0 offen", ('st',), rd=V(160, 4) + V(21) + S(24, 4))
    A.label("K2_END")
    A.e("s_endpgm", "end")
    return A

if __name__ == "__main__":
    out = sys.argv[1] if len(sys.argv) > 1 else "standalone__gqa_block_cached__near_ridge.s"
    k1 = gen_k1(); k2 = gen_k2()
    errs = k1.check() + k2.check()
    for e in errs[:40]: print(e)
    print("hazards:", len(errs))
    txt = HEADER + k1.text() + k2.text() + kd("attn_fused_kernel") + kd("oproj_kernel")
    open(out, "w").write(txt)
```

```python
import sys, struct
from asmlib import *

def f2u(f): return struct.unpack("<I", struct.pack("<f", f))[0]

HEADER = """; Kernarg layout for this problem (64 bytes, ptrs only, base s[0:1]):
; @launch kernel=attn_fused_kernel grid=(256,1,1) block=(512,1,1) lds=163840
; @launch kernel=oproj_kernel grid=(256,1,1) block=(512,1,1) lds=163840
.amdgcn_target "amdgcn-amd-amdhsa--gfx950"
.text
"""

def kd(name, vgpr=512, accum=256, sgpr=102):
    return f"""
.section .rodata,"a"
.p2align 6
.amdhsa_kernel {name}
  .amdhsa_next_free_vgpr {vgpr}
  .amdhsa_next_free_sgpr {sgpr}
  .amdhsa_accum_offset {accum}
  .amdhsa_group_segment_fixed_size 0
  .amdhsa_kernarg_size 64
  .amdhsa_user_sgpr_count 2
  .amdhsa_user_sgpr_kernarg_segment_ptr 1
  .amdhsa_system_sgpr_workgroup_id_x 1
.end_amdhsa_kernel
.text
"""

def srd(A, d, base, size):
    A.salu(f"s_mov_b32 s{d}, s{base}", wr=R('s', d), rd=R('s', base))
    A.salu(f"s_and_b32 s{d+1}, s{base+1}, 0xffff", wr=R('s', d+1), rd=R('s', base+1))
    A.salu(f"s_mov_b32 s{d+2}, {size}", wr=R('s', d+2))
    A.salu(f"s_mov_b32 s{d+3}, 0x00020000", wr=R('s', d+3))

def V(n, c=1): return R('v', n, c)
def Ar(n, c=1): return R('a', n, c)
def S(n, c=1): return R('s', n, c)

C_SCALE = (128.0 ** -0.5) * 1.4426950408889634
THRESH = 8.0 / C_SCALE
STAMP = False
STAMPWG = 37
OPT = {}

def gen_k1():
    A = Asm()
    stamps = []
    def stamp(name):
        if not STAMP: return
        r = 60 + 2*len(stamps)
        stamps.append(name)
        A.e(f's_memtime s[{r}:{r+1}]', 'smem')
    v = A.valu; sa = A.salu
    A.raw(".globl attn_fused_kernel\n.p2align 8\n.type attn_fused_kernel,@function\nattn_fused_kernel:")
    sa("s_cmp_ge_u32 s2, 256", rd=S(2))
    A.e("s_cbranch_scc1 K1_END", "branch")
    stamp('start')
    if STAMP: A.e('s_memrealtime s[92:93]', 'smem')
    A.e('s_load_dwordx2 s[96:97], s[0:1], 48', 'smem')
    A.e("s_load_dwordx4 s[4:7], s[0:1], 0", "smem")
    A.e("s_load_dwordx4 s[8:11], s[0:1], 16", "smem")
    A.e("s_load_dwordx2 s[12:13], s[0:1], 32", "smem")
    A.e("s_load_dwordx2 s[14:15], s[0:1], 56", "smem")
    sa("s_and_b32 s50, s2, 7", wr=S(50))
    sa("s_lshr_b32 s51, s2, 3", wr=S(51))
    sa("s_lshr_b32 s40, s51, 2", wr=S(40))
    sa("s_and_b32 s51, s51, 3", wr=S(51))
    sa("s_lshl_b32 s41, s50, 2", wr=S(41))
    sa("s_add_u32 s41, s41, s51", wr=S(41))
    sa("s_lshr_b32 s42, s41, 1", wr=S(42))
    v("v_lshrrev_b32 v2, 6, v0", wr=V(2), rd=V(0))
    v("v_and_b32 v1, 63, v0", wr=V(1), rd=V(0))
    v("v_readfirstlane_b32 s43, v2", wr=S(43), rd=V(2))
    A.nop(1)
    sa("s_and_b32 s58, s43, 3", wr=S(58), rd=S(43))
    sa("s_lshr_b32 s59, s43, 2", wr=S(59), rd=S(43))
    sa("s_lshl_b32 s44, s58, 10", wr=S(44))
    sa("s_lshl_b32 s45, s40, 4", wr=S(45))
    sa("s_add_u32 s45, s45, s42", wr=S(45))
    sa("s_lshl_b32 s45, s45, 17", wr=S(45))
    sa("s_mul_i32 s53, s40, 112", wr=S(53))
    sa("s_lshl_b32 s55, s41, 8", wr=S(55))
    VX, VWQ, VK, VV, VOUT = 8, 9, 10, 11, 12
    VM, VNEG, VF, VL = 13, 14, 15, 16
    KA = 20; VWA = 44; XA = 112
    SB = [64, 96]
    v("v_lshrrev_b32 v6, 4, v1", wr=V(6), rd=V(1))
    v("v_and_b32 v7, 15, v1", wr=V(7), rd=V(1))
    sa("s_lshl_b32 s54, s58, 2", wr=S(54))
    v("v_add_u32 v56, s54, v6", wr=V(56), rd=V(6) + S(54))
    v("v_lshlrev_b32 v57, 2, v6", wr=V(57), rd=V(6))
    v("v_xor_b32 v57, v7, v57", wr=V(57), rd=V(7) + V(57))
    v("v_lshlrev_b32 v57, 4, v57", wr=V(57), rd=V(57))
    v(f"v_lshl_add_u32 v{VWQ}, v56, 13, v57", wr=V(VWQ), rd=V(56) + V(57))
    v(f"v_add_u32 v{VWQ}, s55, v{VWQ}", wr=V(VWQ), rd=V(VWQ) + S(55))
    v(f"v_lshl_add_u32 v{VV}, v56, 8, v57", wr=V(VV), rd=V(56) + V(57))
    v("v_xor_b32 v58, v7, v56", wr=V(58), rd=V(7) + V(56))
    v("v_lshlrev_b32 v58, 4, v58", wr=V(58), rd=V(58))
    v(f"v_lshl_add_u32 v{VK}, v56, 8, v58", wr=V(VK), rd=V(56) + V(58))
    v("v_lshrrev_b32 v56, 3, v1", wr=V(56), rd=V(1))
    sa("s_lshl_b32 s54, s58, 3", wr=S(54))
    v("v_add_u32 v56, s54, v56", wr=V(56), rd=V(56) + S(54))
    v("v_bfe_u32 v57, v56, 1, 3", wr=V(57), rd=V(56))
    v("v_and_b32 v58, 7, v1", wr=V(58), rd=V(1))
    v("v_xor_b32 v57, v57, v58", wr=V(57), rd=V(57) + V(58))
    v("v_add_u32 v56, s53, v56", wr=V(56), rd=V(56) + S(53))
    v(f"v_mul_u32_u24 v{VX}, 1152, v56", wr=V(VX), rd=V(56))
    v(f"v_lshl_add_u32 v{VX}, v57, 4, v{VX}", wr=V(VX), rd=V(57) + V(VX))
    A.e("s_waitcnt lgkmcnt(0)", "wait")
    srd(A, 16, 4, 8*112*576*2)
    srd(A, 20, 6, 16777216)
    srd(A, 24, 8, 16777216)
    srd(A, 28, 10, 576*4096*2)

    groups = [('P', c) for c in range(9)] + [('QX', 0), ('K', 0), ('K', 1), ('V', 0), ('K', 2), ('V', 1), ('K', 3), ('V', 2), ('V', 3)]
    NG = len(groups)
    gidx = {g: i for i, g in enumerate(groups)}
    slot = {i: i % 5 for i in range(9)}
    slot.update({9: 1, 10: 4, 11: 0, 12: 2, 13: 3, 14: 1, 15: 4, 16: 0, 17: 2})
    owner = {i: (2 if i < 5 else 0) for i in range(9)}
    owner.update({10: 1, 11: 1, 12: 1, 13: 0, 14: 1, 15: 0, 16: 1, 17: 0})
    issue_at = {g: [] for g in range(NG)}
    for g in range(5, 9): issue_at[g - 3].append(g)
    issue_at[6].append(10); issue_at[7].append(11); issue_at[10].append(12); issue_at[9].append(13)
    issue_at[11].append(14); issue_at[12].append(15); issue_at[13].append(16); issue_at[14].append(17)
    vmr = [[], []]
    lab = [0]
    def role_block(role, fn):
        lab[0] += 1
        L = f"K1_R{lab[0]}"
        sa(f"s_cmp_eq_u32 s59, {role}", rd=S(59))
        A.e(f"s_cbranch_scc0 {L}", "branch")
        save = A.vm; A.vm = vmr[role]
        fn()
        A.vm = save
        A.label(L)
    def dma(srdn, vreg, m0off, soff_base_s, soff_imm, tag):
        sa(f"s_add_u32 m0, s44, {m0off}", wr=[('s', 'm0')], rd=S(44))
        if soff_base_s is None:
            sa(f"s_mov_b32 s46, {soff_imm}", wr=S(46))
        else:
            sa(f"s_add_u32 s46, s{soff_base_s}, {soff_imm}", wr=S(46), rd=S(soff_base_s))
        A.vmem(f"buffer_load_dwordx4 v{vreg}, s[{srdn}:{srdn+3}], s46 offen lds", tag, rd=V(vreg) + S(46) + S(srdn, 4))
    def issue_body(gi, par=None):
        ty, j = groups[gi]
        base = slot[gi] * 32768
        tag = ('g', gi)
        for part in range(2):
            for n in range(4):
                if par is not None and n % 2 != par: continue
                mo = base + part*16384 + n*4096
                if ty == 'P':
                    if part == 0: dma(28, VWQ, mo, None, (64*j + 16*n)*8192, tag)
                    else: dma(16, VX, mo, None, 32*n*1152 + j*128, tag)
                else:
                    ch = 2*j + part
                    dma(20 if ty == 'K' else 24, VK if ty == 'K' else VV, mo, 45, ch*16384 + n*4096, tag)
    def issue(gi): role_block(owner[gi], lambda: issue_body(gi))
    def l2pf():
        v("v_lshlrev_b32 v5, 6, v1", wr=V(5), rd=V(1))
        sa("s_lshl_b32 s54, s58, 12", wr=S(54))
        sa("s_add_u32 s54, s54, s45", wr=S(54))
        sa("s_and_b32 s57, s41, 1", wr=S(57))
        sa("s_cmp_eq_u32 s57, 0")
        sa("s_cselect_b32 s36, s20, s24", wr=S(36))
        sa("s_cselect_b32 s37, s21, s25", wr=S(37))
        sa("s_mov_b32 s38, s22", wr=S(38))
        sa("s_mov_b32 s39, s23", wr=S(39))
        for n in range(8):
            A.vmem(f"buffer_load_dword v63, v5, s[36:39], s54 offen", ('pf', n), wr=V(63), rd=V(5) + S(54) + S(36, 4))
            if n < 7: sa("s_add_u32 s54, s54, 16384", wr=S(54), rd=S(54))
    role_block(0, lambda: [issue_body(g, 0) for g in (0, 1, 2, 3, 4)])
    role_block(1, lambda: [issue_body(g, 1) for g in (0, 1, 2, 3, 4)])
    if OPT.get('l2pf', 0): role_block(1, l2pf)
    stamp('issued')
    srd(A, 32, 12, 576*4096*2)
    srd(A, 36, 14, 896*4096*2)
    A.nop(4)
    sa(f"s_mov_b32 s47, {f2u(C_SCALE):#x}", wr=S(47))
    sa(f"s_mov_b32 s48, {f2u(THRESH):#x}", wr=S(48))
    sa(f"s_mov_b32 s52, {f2u(-C_SCALE):#x}", wr=S(52))
    sa("s_mov_b32 s49, 0", wr=S(49))
    v("v_and_b32 v3, 31, v1", wr=V(3), rd=V(1))
    v("v_lshrrev_b32 v4, 5, v1", wr=V(4), rd=V(1))
    v("v_bfe_u32 v5, v1, 4, 1", wr=V(5), rd=V(1))
    v(f"v_lshlrev_b32 v{VOUT}, 17, v5", wr=V(VOUT), rd=V(5))
    v(f"v_lshl_add_u32 v{VOUT}, v4, 8, v{VOUT}", wr=V(VOUT), rd=V(4) + V(VOUT))
    v("v_and_b32 v5, 15, v1", wr=V(5), rd=V(1))
    v(f"v_lshl_add_u32 v{VOUT}, v5, 4, v{VOUT}", wr=V(VOUT), rd=V(5) + V(VOUT))
    sa("s_mul_i32 s54, s40, 7", wr=S(54))
    sa("s_lshl_b32 s57, s58, 1", wr=S(57), rd=S(58))
    sa("s_add_u32 s54, s54, s57", wr=S(54))
    sa("s_lshl_b32 s54, s54, 17", wr=S(54))
    sa("s_lshl_b32 s57, s41, 12", wr=S(57))
    sa("s_add_u32 s54, s54, s57", wr=S(54))
    sa("s_lshl_b32 s57, s59, 11", wr=S(57), rd=S(59))
    sa("s_add_u32 s54, s54, s57", wr=S(54))
    v(f"v_add_u32 v{VOUT}, s54, v{VOUT}", wr=V(VOUT), rd=V(VOUT) + S(54))
    v("v_bfe_u32 v56, v1, 4, 1", wr=V(56), rd=V(1))
    v("v_bfe_u32 v57, v1, 2, 2", wr=V(57), rd=V(1))
    v("v_and_b32 v58, 1, v1", wr=V(58), rd=V(1))
    v("v_bfe_u32 v59, v1, 1, 1", wr=V(59), rd=V(1))
    v("v_lshl_add_u32 v60, v4, 5, v57", wr=V(60), rd=V(4) + V(57))
    v("v_lshlrev_b32 v60, 8, v60", wr=V(60), rd=V(60))
    v("v_lshl_add_u32 v60, v56, 5, v60", wr=V(60), rd=V(56) + V(60))
    v("v_lshl_add_u32 v60, v58, 4, v60", wr=V(60), rd=V(58) + V(60))
    v("v_lshl_add_u32 v60, v59, 3, v60", wr=V(60), rd=V(59) + V(60))
    sa("s_lshl_b32 s54, s59, 1", wr=S(54), rd=S(59))
    v("v_xor_b32 v57, s54, v57", wr=V(57), rd=V(57) + S(54))
    sa("s_lshl_b32 s56, s59, 14", wr=S(56), rd=S(59))
    for dt in range(4):
        v(f"v_xor_b32 v2, {dt}, v57", wr=V(2), rd=V(57))
        v(f"v_lshl_add_u32 v{VWA+dt}, v2, 6, v60", wr=V(VWA+dt), rd=V(2) + V(60))
        v(f"v_add_u32 v{VWA+4+dt}, 0x10000, v{VWA+dt}", wr=V(VWA+4+dt), rd=V(VWA+dt))
        v(f"v_add_u32 v{VWA+8+dt}, 0x20000, v{VWA+dt}", wr=V(VWA+8+dt), rd=V(VWA+dt))
    sa("s_lshl_b32 s54, s58, 5", wr=S(54), rd=S(58))
    v("v_add_u32 v56, s54, v3", wr=V(56), rd=V(3) + S(54))
    v("v_bfe_u32 v57, v56, 1, 3", wr=V(57), rd=V(56))
    v("v_lshlrev_b32 v56, 7, v56", wr=V(56), rd=V(56))
    v("v_add_u32 v56, 0x4000, v56", wr=V(56), rd=V(56))
    for sp in range(4):
        v(f"v_lshl_add_u32 v2, v4, 2, {sp}", wr=V(2), rd=V(4))
        v("v_xor_b32 v2, v2, v57", wr=V(2), rd=V(2) + V(57))
        v(f"v_lshl_add_u32 v{XA+sp}, v2, 4, v56", wr=V(XA+sp), rd=V(2) + V(56))
        v(f"v_add_u32 v{XA+4+sp}, 0x10000, v{XA+sp}", wr=V(XA+4+sp), rd=V(XA+sp))
        v(f"v_add_u32 v{XA+8+sp}, 0x20000, v{XA+sp}", wr=V(XA+8+sp), rd=V(XA+sp))
    v("v_bfe_u32 v2, v1, 2, 1", wr=V(2), rd=V(1))
    v("v_bfe_u32 v56, v1, 3, 1", wr=V(56), rd=V(1))
    v("v_bfe_u32 v57, v1, 4, 1", wr=V(57), rd=V(1))
    v("v_and_b32 v58, 3, v1", wr=V(58), rd=V(1))
    v("v_lshl_add_u32 v58, v56, 2, v58", wr=V(58), rd=V(56) + V(58))
    v("v_lshl_add_u32 v58, v57, 3, v58", wr=V(58), rd=V(57) + V(58))
    v("v_lshl_add_u32 v59, v2, 5, v58", wr=V(59), rd=V(2) + V(58))
    v("v_lshlrev_b32 v59, 8, v59", wr=V(59), rd=V(59))
    v("v_add_u32 v59, s56, v59", wr=V(59), rd=V(59) + S(56))
    sa("s_lshl_b32 s54, s59, 3", wr=S(54), rd=S(59))
    v("v_xor_b32 v58, s54, v58", wr=V(58), rd=V(58) + S(54))
    for s_ in range(8):
        v(f"v_add_u32 v2, {2*s_}, v4", wr=V(2), rd=V(4))
        v("v_xor_b32 v2, v2, v58", wr=V(2), rd=V(2) + V(58))
        v(f"v_lshl_add_u32 v{KA+s_}, v2, 4, v59", wr=V(KA+s_), rd=V(2) + V(59))
        v(f"v_add_u32 v{KA+8+s_}, 0x10000, v{KA+s_}", wr=V(KA+8+s_), rd=V(KA+s_))
        v(f"v_add_u32 v{KA+16+s_}, 0x20000, v{KA+s_}", wr=V(KA+16+s_), rd=V(KA+s_))

    NF = 7; FB = 96; PD = 4
    OB = 0; QF = 64; XB = 32; QT = SB[1]
    items = []
    def win(gi):
        p = slot[gi]
        return p >> 1, (p & 1) * 32768
    def vw_reads(gi, sp, dt, frag):
        st, rel = win(gi)
        av = VWA + 4*st + dt
        return [(f"ds_read_b64_tr_b16 a[{frag+2*t}:{frag+2*t+1}], v{av} offset:{rel + (8*sp + 4*t)*256}", Ar(frag+2*t, 2), V(av)) for t in range(2)]
    def add_item(gi, reads_fn, mf, aux=()):
        frag = FB + 4*(len(items) % NF)
        items.append(dict(gi=gi, reads=list(aux) + reads_fn(frag), frag=frag, mf=mf))
    for c in range(9):
        gi = gidx[('P', c)]
        st, rel = win(gi)
        for sp in range(4):
            for dt in range(2):
                xb = XB + 4*sp
                aux = []
                if dt == 0:
                    aux = [(f"ds_read_b128 a[{xb}:{xb+3}], v{XA + 4*st + sp} offset:{rel}", Ar(xb, 4), V(XA + 4*st + sp))]
                add_item(gi, (lambda f, gi=gi, sp=sp, dt=dt: vw_reads(gi, sp, dt, f)),
                         (lambda f, c=c, sp=sp, dt=dt, xb=xb: A.mfma(SB[0] + 16*dt, f, xb, None, 'v', 'a', 'a', czero=(c == 0 and sp == 0))), aux)
    n_p1 = len(items)
    def add_qk(jj):
        gi = gidx[('K', jj)]
        st, rel = win(gi)
        if jj == 0: order = [(T, s_) for T in range(2) for s_ in range(4)] + [(T, s_) for T in range(2) for s_ in range(4, 8)]
        else: order = [(T, s_) for T in range(2) for s_ in range(8)]
        for T, s_ in order:
            av = KA + 8*st + s_
            if jj == 0 and s_ < 4: bt, br = 'v', QT + 4*s_
            else: bt, br = 'a', QF + 4*s_
            add_item(gi, (lambda f, av=av, rel=rel, T=T: [(f"ds_read_b128 a[{f}:{f+3}], v{av} offset:{rel + T*4096}", Ar(f, 4), V(av))]),
                     (lambda f, jj=jj, T=T, s_=s_, bt=bt, br=br: A.mfma(SB[jj & 1] + 16*T, f, br, None, 'v', 'a', bt, czero=(s_ == 0))))
    def add_pv(jj):
        gi = gidx[('V', jj)]
        for sp in range(4):
            for dt in range(4):
                add_item(gi, (lambda f, gi=gi, sp=sp, dt=dt: vw_reads(gi, sp, dt, f)),
                         (lambda f, jj=jj, sp=sp, dt=dt: A.mfma(OB + 16*dt, f, SB[jj & 1] + 8*sp, None, 'a', 'a', 'v', czero=(jj == 0 and sp == 0))))
    start = {}
    start[('QK', 0)] = len(items); add_qk(0)
    start[('QK', 1)] = len(items); add_qk(1)
    for j in range(1, 4):
        start[('PV', j-1)] = len(items); add_pv(j-1)
        if j + 1 <= 3:
            start[('QK', j+1)] = len(items); add_qk(j+1)
    start[('PV', 3)] = len(items); add_pv(3)
    NI = len(items)

    fill = [[] for _ in range(NI)]
    pre = [[] for _ in range(NI)]
    def spread(ops, i0, i1):
        n = i1 - i0
        for k, op in enumerate(ops):
            fill[i0 + min(n - 1, (k * n) // len(ops))].append(op)

    rare = []
    def sm_ops(j):
        sb = SB[j & 1]
        ops = []
        def mx3(dst, a, b, c): ops.append(lambda: v(f"v_max3_f32 v{dst}, v{a}, v{b}, v{c}", wr=V(dst), rd=V(a) + V(b) + V(c)))
        for T, acc in ((0, 2), (1, 3)):
            b = sb + 16*T
            mx3(acc, b, b+1, b+2)
            for e in range(3, 15, 2): mx3(acc, acc, b+e, b+e+1)
            ops.append(lambda acc=acc, b=b: v(f"v_max_f32 v{acc}, v{acc}, v{b+15}", wr=V(acc), rd=V(acc) + V(b+15)))
        ops.append(lambda: v("v_max_f32 v2, v2, v3", wr=V(2), rd=V(2) + V(3)))
        def xh():
            v("v_mov_b32 v3, v2", wr=V(3), rd=V(2))
            A.nop(1)
            v("v_permlane32_swap_b32 v3, v2", wr=V(2) + V(3), rd=V(2) + V(3))
            v("v_max_f32 v2, v2, v3", wr=V(2), rd=V(2) + V(3))
            if j == 0:
                v(f"v_mov_b32 v{VM}, v2", wr=V(VM), rd=V(2))
                v(f"v_mul_f32 v{VNEG}, s52, v2", wr=V(VNEG), rd=V(2) + S(52))
                for k in range(4): v(f"v_mov_b32 v{VL+k}, 0", wr=V(VL+k))
            else:
                v(f"v_sub_f32 v3, v2, v{VM}", wr=V(3), rd=V(2) + V(VM))
                v("v_cmp_lt_f32 vcc, s48, v3", wr=[('s', 'vcc')], rd=V(3) + S(48))
                A.e(f"s_cbranch_vccnz K1_UPD{j}", "branch")
                A.label(f"K1_UPDR{j}")
                rare.append(('upd', j))
        ops.append(xh)
        for g in range(8):
            b = sb + 4*g
            pd = sb + 8*(g // 2) + 2*(g % 2)
            for k in range(4):
                ops.append(lambda b=b, k=k: v(f"v_fma_f32 v{b+k}, v{b+k}, s47, v{VNEG}", wr=V(b+k), rd=V(b+k) + V(VNEG) + S(47)))
            for k in range(4):
                ops.append(lambda b=b, k=k: A.trans(f"v_exp_f32 v{b+k}, v{b+k}", wr=V(b+k), rd=V(b+k)))
            for k in range(4):
                ops.append(lambda b=b, k=k: v(f"v_add_f32 v{VL+k}, v{VL+k}, v{b+k}", wr=V(VL+k), rd=V(VL+k) + V(b+k)))
            for k in range(2):
                ops.append(lambda b=b, k=k, pd=pd: v(f"v_cvt_pk_bf16_f32 v{pd+k}, v{b+2*k}, v{b+2*k+1}", wr=V(pd+k), rd=V(b+2*k, 2)))
        return ops
    spread(sm_ops(0), start[('QK', 1)] + 1, start[('QK', 1)] + 16)
    for j in range(1, 4):
        spread(sm_ops(j), start[('PV', j-1)] + 1, start[('PV', j)])
    for j in range(1, 4):
        def chk(j=j):
            sa("s_cmp_lg_u32 s49, 0", rd=S(49))
            A.e(f"s_cbranch_scc1 K1_RES{j}", "branch")
            A.label(f"K1_RESR{j}")
            rare.append(('res', j))
        pre[start[('PV', j)]].append(chk)

    synced = set()
    def sync(gi):
        if gi in synced: return
        synced.add(gi)
        if STAMP and groups[gi] in (('P',1),('P',2),('P',5),('K',0),('K',1),('V',0),('K',2),('V',2),('V',3)): stamp(str(groups[gi]))
        if groups[gi][0] != 'QX':
            def w():
                A.wait_vm(('g', gi))
            if owner[gi] == 2:
                role_block(0, w); role_block(1, w)
            else:
                role_block(owner[gi], w)
        A.barrier()
        for g in issue_at[gi]: issue(g)
    def emit_reads(i):
        sync(items[i]['gi'])
        for (t, w_, r_) in items[i]['reads']:
            A.lds(t, ('f', i), wr=w_, rd=r_)

    gq = gidx[('QX', 0)]
    qb = slot[gq] * 32768
    iq2 = start[('QK', 0)] + 8
    for k in range(PD): emit_reads(k)
    for i in range(NI):
        it = items[i]
        if i == n_p1:
            stamp('qx')
            A.nop(7); A.nop(3)
            for dt in range(2):
                for half in range(2):
                    for p in range(4):
                        src = SB[0] + 16*dt + 8*half + 2*p
                        dst = QT + 4*(2*dt + half) + p
                        v(f"v_cvt_pk_bf16_f32 v{dst}, v{src}, v{src+1}", wr=V(dst), rd=V(src, 2))
            sa("s_lshl_b32 s54, s58, 13", wr=S(54), rd=S(58))
            sa("s_lshl_b32 s57, s59, 12", wr=S(57), rd=S(59))
            v("v_lshlrev_b32 v5, 4, v1", wr=V(5), rd=V(1))
            v("v_add_u32 v5, s54, v5", wr=V(5), rd=V(5) + S(54))
            v(f"v_add_u32 v5, {qb}, v5", wr=V(5), rd=V(5))
            v("v_add_u32 v6, s57, v5", wr=V(6), rd=V(5) + S(57))
            v("v_xor_b32 v7, 0x1000, v6", wr=V(7), rd=V(6))
            for f in range(4):
                A.lds(f"ds_write_b128 v6, v[{QT+4*f}:{QT+4*f+3}] offset:{f*1024}", ('qw', f), rd=V(6) + V(QT+4*f, 4))
            for k in range(12):
                v(f"v_add_u32 v{VWA+k}, s56, v{VWA+k}", wr=V(VWA+k), rd=V(VWA+k) + S(56))
        if i == iq2:
            A.wait_lg(('qw', 3))
            sync(gq)
            for f in range(4):
                A.lds(f"ds_read_b128 a[{QF+16+4*f}:{QF+16+4*f+3}], v7 offset:{f*1024}", ('qr', f), wr=Ar(QF+16+4*f, 4), rd=V(7))
            for f in range(4):
                A.lds(f"ds_read_b128 a[{QF+4*f}:{QF+4*f+3}], v6 offset:{f*1024}", ('qr', 4+f), wr=Ar(QF+4*f, 4), rd=V(6))
            A.wait_lg(('qr', 3))
        for op in pre[i]: op()
        if i + PD < NI: emit_reads(i + PD)
        A.wait_lg(('f', i))
        it['mf'](it['frag'])
        for op in fill[i]: op()

    stamp('epi')
    sa("s_mul_i32 s46, s2, 18432", wr=S(46))
    v("v_lshlrev_b32 v4, 4, v0", wr=V(4), rd=V(0))
    for k in range(3):
        A.vmem(f"buffer_load_dwordx4 v[56:59], v4, s[32:35], s46 offen", ('pf', k), wr=V(56, 4), rd=V(4) + S(46) + S(32, 4))
        if k < 2: sa("s_add_u32 s46, s46, 8192", wr=S(46), rd=S(46))
    v(f"v_add_f32 v{VL}, v{VL}, v{VL+1}", wr=V(VL), rd=V(VL, 2))
    v(f"v_add_f32 v{VL+2}, v{VL+2}, v{VL+3}", wr=V(VL+2), rd=V(VL+2, 2))
    v(f"v_add_f32 v2, v{VL}, v{VL+2}", wr=V(2), rd=V(VL) + V(VL+2))
    v("v_mov_b32 v3, v2", wr=V(3), rd=V(2))
    A.nop(1)
    v("v_permlane32_swap_b32 v3, v2", wr=V(2) + V(3), rd=V(2) + V(3))
    v(f"v_add_f32 v{VL}, v2, v3", wr=V(VL), rd=V(2) + V(3))
    XB0 = 3*32768
    v("v_lshlrev_b32 v2, 4, v1", wr=V(2), rd=V(1))
    sa("s_lshl_b32 s54, s43, 13", wr=S(54), rd=S(43))
    sa(f"s_add_u32 s54, s54, {XB0}", wr=S(54))
    v("v_add_u32 v3, s54, v2", wr=V(3), rd=V(2) + S(54))
    A.nop(3)
    for g in range(8):
        A.lds(f"ds_write_b128 v3, a[{OB+32+4*g}:{OB+35+4*g}] offset:{g*1024}", ('ow', g), rd=V(3) + Ar(OB+32+4*g, 4))
    v("v_lshlrev_b32 v4, 3, v1", wr=V(4), rd=V(1))
    sa("s_lshl_b32 s54, s43, 9", wr=S(54), rd=S(43))
    sa("s_add_u32 s54, s54, 32768", wr=S(54))
    v("v_add_u32 v5, s54, v4", wr=V(5), rd=V(4) + S(54))
    v(f"v_mov_b32 v6, v{VM}", wr=V(6), rd=V(VM))
    v(f"v_mov_b32 v7, v{VL}", wr=V(7), rd=V(VL))
    A.lds("ds_write_b64 v5, v[6:7]", ('sw',), rd=V(5) + V(6, 2))
    for r_ in range(32):
        v(f"v_accvgpr_read_b32 v{64+r_}, a{OB+r_}", wr=V(64+r_), rd=Ar(OB+r_))
    A.wait_lg0()
    A.barrier()
    sa("s_xor_b32 s57, s43, 4", wr=S(57), rd=S(43))
    sa("s_lshl_b32 s54, s57, 13", wr=S(54))
    sa(f"s_add_u32 s54, s54, {XB0}", wr=S(54))
    v("v_add_u32 v3, s54, v2", wr=V(3), rd=V(2) + S(54))
    sa("s_lshl_b32 s54, s57, 9", wr=S(54))
    sa("s_add_u32 s54, s54, 32768", wr=S(54))
    v("v_add_u32 v5, s54, v4", wr=V(5), rd=V(4) + S(54))
    A.lds("ds_read_b64 v[6:7], v5", ('sr',), wr=V(6, 2), rd=V(5))
    for g in range(8):
        A.lds(f"ds_read_b128 v[{96+4*g}:{99+4*g}], v3 offset:{g*1024}", ('or', g), wr=V(96+4*g, 4), rd=V(3))
    A.wait_lg(('sr',))
    v(f"v_max_f32 v2, v{VM}, v6", wr=V(2), rd=V(VM) + V(6))
    v(f"v_sub_f32 v3, v{VM}, v2", wr=V(3), rd=V(VM) + V(2))
    v("v_sub_f32 v4, v6, v2", wr=V(4), rd=V(6) + V(2))
    v("v_mul_f32 v3, s47, v3", wr=V(3), rd=V(3) + S(47))
    v("v_mul_f32 v4, s47, v4", wr=V(4), rd=V(4) + S(47))
    A.trans("v_exp_f32 v3, v3", wr=V(3), rd=V(3))
    A.trans("v_exp_f32 v4, v4", wr=V(4), rd=V(4))
    A.nop(0)
    v(f"v_mul_f32 v5, v{VL}, v3", wr=V(5), rd=V(VL) + V(3))
    v("v_fmac_f32 v5, v7, v4", wr=V(5), rd=V(5) + V(7) + V(4))
    A.trans("v_rcp_f32 v5, v5", wr=V(5), rd=V(5))
    A.nop(0)
    v("v_mul_f32 v3, v3, v5", wr=V(3), rd=V(3) + V(5))
    v("v_mul_f32 v4, v4, v5", wr=V(4), rd=V(4) + V(5))
    v("v_and_b32 v5, 31, v1", wr=V(5), rd=V(1))
    sa("s_lshl_b32 s54, s58, 5", wr=S(54), rd=S(58))
    v("v_add_u32 v5, s54, v5", wr=V(5), rd=V(5) + S(54))
    v("v_cmp_gt_u32 vcc, 112, v5", wr=[('s', 'vcc')], rd=V(5))
    for r_ in range(32):
        v(f"v_mul_f32 v{64+r_}, v{64+r_}, v3", wr=V(64+r_), rd=V(64+r_) + V(3))
    A.wait_lg0()
    for r_ in range(32):
        v(f"v_fmac_f32 v{64+r_}, v{96+r_}, v4", wr=V(64+r_), rd=V(64+r_) + V(96+r_) + V(4))
    sa("s_and_saveexec_b64 s[56:57], vcc", wr=S(56, 2), rd=[('s', 'vcc')])
    for g in range(4):
        ob = 20 + 4*g
        for p in range(4):
            v(f"v_cvt_pk_bf16_f32 v{ob+p}, v{64+8*g+2*p}, v{64+8*g+2*p+1}", wr=V(ob+p), rd=V(64+8*g+2*p, 2))
        A.vmem(f"buffer_store_dwordx4 v[{ob}:{ob+3}], v{VOUT}, s[36:39], 0 offen offset:{g*512}", ('st', g), rd=V(ob, 4) + V(VOUT) + S(36, 4))
    sa("s_mov_b64 exec, s[56:57]")
    if STAMP:
        stamp('end')
        A.e('s_memrealtime s[94:95]', 'smem')
        A.e('s_waitcnt lgkmcnt(0) vmcnt(0)', 'wait')
        A.raw(f'''    s_cmp_lg_u32 s2, {STAMPWG}
    s_cbranch_scc1 K1_NOST
    s_cmp_lg_u32 s43, 0
    s_cbranch_scc1 K1_NOST
    s_mov_b32 s98, 256
    s_mov_b32 s99, 0x00020000
    v_mov_b32 v4, 0''')
        for k in range(len(stamps)):
            A.raw(f'    s_sub_u32 s46, s{60+2*k}, s60\n    v_mov_b32 v5, s46\n    buffer_store_dword v5, v4, s[96:99], 0 offen offset:{4*k}')
        A.raw(f'    s_sub_u32 s46, s94, s92\n    v_mov_b32 v5, s46\n    buffer_store_dword v5, v4, s[96:99], 0 offen offset:{4*len(stamps)}')
        A.raw('K1_NOST:')
        print('stamps:', stamps)
    A.e("s_endpgm", "end")
    for kind, j in rare:
        if kind == 'upd':
            A.label(f"K1_UPD{j}")
            A.raw(f"""    s_nop 7
    v_max_f32 v3, v{VM}, v2
    v_sub_f32 v{VF}, v{VM}, v3
    v_mul_f32 v{VF}, s47, v{VF}
    v_exp_f32 v{VF}, v{VF}
    v_mov_b32 v{VM}, v3
    v_mul_f32 v{VNEG}, s52, v3
    s_nop 1
    v_mul_f32 v{VL}, v{VL}, v{VF}
    v_mul_f32 v{VL+1}, v{VL+1}, v{VF}
    v_mul_f32 v{VL+2}, v{VL+2}, v{VF}
    v_mul_f32 v{VL+3}, v{VL+3}, v{VF}
    s_mov_b32 s49, 1
    s_branch K1_UPDR{j}""")
        else:
            A.label(f"K1_RES{j}")
            A.raw("    s_nop 15\n    s_nop 15")
            for r in range(64):
                A.raw(f"    v_accvgpr_read_b32 v3, a{OB+r}\n    s_nop 0\n    v_mul_f32 v3, v3, v{VF}\n    s_nop 0\n    v_accvgpr_write_b32 a{OB+r}, v3")
            A.raw(f"    s_nop 7\n    s_mov_b32 s49, 0\n    s_branch K1_RESR{j}")
    A.label("K1_END")
    A.raw("    s_endpgm")
    return A

def gen_k2():
    A = Asm()
    v = A.valu; sa = A.salu
    stamps = []
    def stamp(name):
        if not STAMP: return
        r = 60 + 2*len(stamps)
        stamps.append(name)
        A.e(f's_memtime s[{r}:{r+1}]', 'smem')
    A.raw(".globl oproj_kernel\n.p2align 8\n.type oproj_kernel,@function\noproj_kernel:")
    sa("s_cmp_ge_u32 s2, 256", rd=S(2))
    A.e("s_cbranch_scc1 K2_END", "branch")
    stamp('start')
    A.e("s_load_dwordx4 s[4:7], s[0:1], 32", "smem")
    A.e("s_load_dwordx2 s[10:11], s[0:1], 56", "smem")
    sa("s_and_b32 s40, s2, 7", wr=S(40))
    sa("s_lshr_b32 s41, s2, 3", wr=S(41))
    sa("s_lshl_b32 s40, s40, 5", wr=S(40))
    sa("s_add_u32 s40, s40, s41", wr=S(40))
    sa("s_lshr_b32 s41, s40, 6", wr=S(41))
    sa("s_and_b32 s42, s40, 63", wr=S(42))
    sa("s_cmp_eq_u32 s42, 63")
    A.e("s_cbranch_scc1 K2_END", "branch")
    sa("s_mul_i32 s43, s42, 37", wr=S(43))
    sa("s_lshr_b32 s43, s43, 8", wr=S(43))
    sa("s_mul_i32 s44, s43, 7", wr=S(44))
    sa("s_sub_u32 s44, s42, s44", wr=S(44))
    sa("s_mul_i32 s45, s41, 7", wr=S(45))
    sa("s_add_u32 s44, s44, s45", wr=S(44))
    v("v_lshrrev_b32 v2, 6, v0", wr=V(2), rd=V(0))
    v("v_and_b32 v1, 63, v0", wr=V(1), rd=V(0))
    v("v_readfirstlane_b32 s46, v2", wr=S(46), rd=V(2))
    A.nop(1)
    sa("s_mul_i32 s47, s46, 20480", wr=S(47), rd=S(46))
    VO, VW = 8, 9
    v("v_bfe_u32 v3, v1, 4, 1", wr=V(3), rd=V(1))
    v("v_lshrrev_b32 v4, 5, v1", wr=V(4), rd=V(1))
    v("v_and_b32 v5, 15, v1", wr=V(5), rd=V(1))
    v(f"v_lshlrev_b32 v{VO}, 17, v3", wr=V(VO), rd=V(3))
    v(f"v_lshl_add_u32 v{VO}, v4, 8, v{VO}", wr=V(VO), rd=V(4) + V(VO))
    v(f"v_lshl_add_u32 v{VO}, v5, 4, v{VO}", wr=V(VO), rd=V(5) + V(VO))
    sa("s_lshl_b32 s48, s44, 18", wr=S(48))
    sa("s_lshl_b32 s49, s46, 14", wr=S(49), rd=S(46))
    sa("s_add_u32 s48, s48, s49", wr=S(48))
    v(f"v_add_u32 v{VO}, s48, v{VO}", wr=V(VO), rd=V(VO) + S(48))
    v("v_lshrrev_b32 v6, 3, v1", wr=V(6), rd=V(1))
    v("v_and_b32 v7, 7, v1", wr=V(7), rd=V(1))
    v("v_bfe_u32 v11, v1, 4, 1", wr=V(11), rd=V(1))
    v("v_lshlrev_b32 v11, 2, v11", wr=V(11), rd=V(11))
    v("v_xor_b32 v11, v11, v7", wr=V(11), rd=V(11) + V(7))
    v(f"v_mul_u32_u24 v{VW}, 1152, v6", wr=V(VW), rd=V(6))
    v(f"v_lshl_add_u32 v{VW}, v11, 4, v{VW}", wr=V(VW), rd=V(11) + V(VW))
    sa("s_lshl_b32 s51, s43, 7", wr=S(51))
    v(f"v_add_u32 v{VW}, s51, v{VW}", wr=V(VW), rd=V(VW) + S(51))
    sa("s_mul_i32 s52, s46, 589824", wr=S(52), rd=S(46))
    A.e("s_waitcnt lgkmcnt(0)", "wait")
    srd(A, 16, 10, 64 << 20)
    srd(A, 20, 4, 4096*576*2)
    srd(A, 24, 6, 896*576*2)
    NS = 5; NU = 16
    OF = 0
    def issue(u):
        for j in range(2):
            ks = 2*u + j
            sa(f"s_mov_b32 s54, {(ks*512) & ~4095}", wr=S(54))
            A.vmem(f"buffer_load_dwordx4 a[{OF+4*ks}:{OF+4*ks+3}], v{VO}, s[16:19], s54 offen offset:{(ks*512) & 4095}", ('o', ks), wr=Ar(OF+4*ks, 4), rd=V(VO) + S(54) + S(16, 4))
        for n in range(4):
            sa(f"s_add_u32 m0, s47, {(u % NS)*4096 + n*1024}", wr=[('s', 'm0')], rd=S(47))
            sa(f"s_add_u32 s53, s52, {(32*u + 8*n)*1152}", wr=S(53), rd=S(52))
            A.vmem(f"buffer_load_dwordx4 v{VW}, s[20:23], s53 offen lds", ('c', u), rd=V(VW) + S(53) + S(20, 4))
    for u in range(NS): issue(u)
    stamp('issued')
    v("v_bfe_u32 v11, v1, 4, 1", wr=V(11), rd=V(1))
    v("v_bfe_u32 v12, v1, 2, 2", wr=V(12), rd=V(1))
    v("v_and_b32 v13, 1, v1", wr=V(13), rd=V(1))
    v("v_bfe_u32 v14, v1, 1, 1", wr=V(14), rd=V(1))
    v("v_lshl_add_u32 v15, v4, 3, v12", wr=V(15), rd=V(4) + V(12))
    v("v_lshlrev_b32 v15, 7, v15", wr=V(15), rd=V(15))
    v("v_lshl_add_u32 v15, v11, 5, v15", wr=V(15), rd=V(11) + V(15))
    v("v_lshl_add_u32 v15, v13, 4, v15", wr=V(15), rd=V(13) + V(15))
    v("v_lshl_add_u32 v15, v14, 3, v15", wr=V(15), rd=V(14) + V(15))
    v("v_add_u32 v15, s47, v15", wr=V(15), rd=V(15) + S(47))
    v("v_lshrrev_b32 v12, 1, v12", wr=V(12), rd=V(12))
    WA = 24
    for ct in range(2):
        v(f"v_xor_b32 v2, {ct}, v12", wr=V(2), rd=V(12))
        v(f"v_lshl_add_u32 v{WA+ct}, v2, 6, v15", wr=V(WA+ct), rd=V(2) + V(15))
    NF = 10; FB = 64; PD = 4; ACC = 32
    items = [(ks, ct) for ks in range(32) for ct in range(2)]
    NI = len(items)
    def reads(i):
        ks, ct = items[i]
        u = ks // 2
        f = FB + 4*(i % NF)
        for t in range(2):
            A.lds(f"ds_read_b64_tr_b16 v[{f+2*t}:{f+2*t+1}], v{WA+ct} offset:{(u % NS)*4096 + (16*(ks % 2) + 4*t)*128}", ('f', i), wr=V(f+2*t, 2), rd=V(WA+ct))
    waited = set()
    def need_unit(u):
        if u in waited or u >= NU: return
        waited.add(u)
        A.wait_vm(('c', u))
    need_unit(0)
    for k in range(PD): reads(k)
    for i in range(NI):
        ks, ct = items[i]
        u = ks // 2
        if ct == 0 and ks % 2 == 0 and u >= 1 and u - 1 + NS < NU:
            issue(u - 1 + NS)
        if i + PD < NI:
            need_unit(items[i + PD][0] // 2)
            reads(i + PD)
        A.wait_lg(('f', i))
        A.mfma(ACC + 16*ct, FB + 4*(i % NF), OF + 4*ks, None, 'v', 'v', 'a', czero=(ks == 0))
    stamp('red')
    A.barrier()
    A.nop(7)
    v("v_lshlrev_b32 v2, 4, v1", wr=V(2), rd=V(1))
    sa("s_lshl_b32 s54, s46, 13", wr=S(54), rd=S(46))
    v("v_add_u32 v3, s54, v2", wr=V(3), rd=V(2) + S(54))
    for g in range(8):
        A.lds(f"ds_write_b128 v3, v[{ACC+4*g}:{ACC+4*g+3}] offset:{g*1024}", ('w', g), rd=V(3) + V(ACC+4*g, 4))
    A.wait_lg0()
    A.barrier()
    sa("s_lshl_b32 s54, s46, 10", wr=S(54), rd=S(46))
    v("v_add_u32 v3, s54, v2", wr=V(3), rd=V(2) + S(54))
    for ww in range(8):
        A.lds(f"ds_read_b128 v[{64+4*ww}:{67+4*ww}], v3 offset:{ww*8192}", ('r', ww), wr=V(64+4*ww, 4), rd=V(3))
    v("v_and_b32 v3, 31, v1", wr=V(3), rd=V(1))
    sa("s_lshl_b32 s55, s44, 5", wr=S(55))
    v("v_add_u32 v5, s55, v3", wr=V(5), rd=V(3) + S(55))
    v("v_mul_u32_u24 v5, 1152, v5", wr=V(5), rd=V(5))
    v("v_lshl_add_u32 v5, v4, 4, v5", wr=V(5), rd=V(4) + V(5))
    sa("s_lshr_b32 s55, s46, 1", wr=S(55), rd=S(46))
    sa("s_lshl_b32 s55, s55, 5", wr=S(55))
    sa("s_and_b32 s56, s46, 1", wr=S(56), rd=S(46))
    sa("s_lshl_b32 s56, s56, 3", wr=S(56))
    sa("s_add_u32 s55, s55, s56", wr=S(55))
    sa("s_add_u32 s55, s55, s51", wr=S(55))
    v("v_add_u32 v5, s55, v5", wr=V(5), rd=V(5) + S(55))
    A.wait_lg0()
    for st2 in (16, 8, 4):
        for r_ in range(st2):
            v(f"v_add_f32 v{64+r_}, v{64+r_}, v{64+st2+r_}", wr=V(64+r_), rd=V(64+r_) + V(64+st2+r_))
    v("v_cvt_pk_bf16_f32 v96, v64, v65", wr=V(96), rd=V(64, 2))
    v("v_cvt_pk_bf16_f32 v97, v66, v67", wr=V(97), rd=V(66, 2))
    A.vmem("buffer_store_dwordx2 v[96:97], v5, s[24:27], 0 offen", ('st',), rd=V(96, 2) + V(5) + S(24, 4))
    if STAMP:
        stamp('end')
        A.e('s_waitcnt lgkmcnt(0) vmcnt(0)', 'wait')
        A.raw(f'''    s_cmp_lg_u32 s46, 0
    s_cbranch_scc1 K2_END
    s_cmp_lg_u32 s40, 73
    s_cbranch_scc1 K2_END
    v_mov_b32 v4, 0''')
        A.raw('    s_mov_b32 s54, 0x3000000')
        for k in range(len(stamps)):
            A.raw(f'    s_sub_u32 s55, s{60+2*k}, s60\n    v_mov_b32 v5, s55\n    buffer_store_dword v5, v4, s[16:19], s54 offen offset:{4*k}')
        print('k2 stamps:', stamps)
    A.label("K2_END")
    A.e("s_endpgm", "end")
    return A

if __name__ == "__main__":
    if '--stamp' in sys.argv:
        STAMP = True; sys.argv.remove('--stamp')
    out = sys.argv[1] if len(sys.argv) > 1 else "standalone__gqa_block_cached__near_ridge.s"
    k1 = gen_k1(); k2 = gen_k2()
    errs = k1.check() + k2.check()
    for e in errs[:40]: print(e)
    print("hazards:", len(errs))
    txt = HEADER + k1.text() + k2.text() + kd("attn_fused_kernel", 256, 128) + kd("oproj_kernel", 256, 128)
    open(out, "w").write(txt)
```
